```python
import torch

def _softmax(x, axis=-1):
    return torch.softmax(x, dim=axis)
def _gelu(x):
    return torch.nn.functional.gelu(x, approximate="tanh")
def _silu(x):
    return torch.nn.functional.silu(x)
def _sigmoid(x):
    return torch.sigmoid(x)
def _layernorm(x, axis=-1, eps=1e-5):
    m = x.mean(dim=axis, keepdim=True)
    v = x.var(dim=axis, keepdim=True, unbiased=False)
    return (x - m) / torch.sqrt(v + eps)
def _scatter_add(tgt, idx, src, axis=0):
    return tgt.clone().index_add_(axis, idx, src)
def _segment_sum(src, seg, n):
    out = torch.zeros((n,) + src.shape[1:], dtype=src.dtype)
    return out.index_add_(0, seg, src)
def _pad(x, pw):
    flat = tuple(v for pair in reversed(pw) for v in pair)
    return torch.nn.functional.pad(x, flat)

kernel_name = 'gated_mix__spectral_gfnet__mixer_token_mlp__prompt'

def setup_inputs():

    _w = (lambda a: (lambda t: t.to(torch.bfloat16) if t.is_floating_point() else t)(torch.as_tensor(a)))
    def _A_setup():
        B, S, D = 1, 2048, 512
        Df = D // 2 + 1
        return {
            "x": _w((lambda *s: torch.randn(*s, dtype=torch.bfloat16) * 0.05)(B, S, D)),
            "w_r": _w((lambda *s: torch.randn(*s, dtype=torch.bfloat16) * 0.8)(S, Df) * 0.02),
            "w_i": _w((lambda *s: torch.randn(*s, dtype=torch.bfloat16) * 1.6)(S, Df) * 0.02),
        }
    _A_in = _A_setup()

    def _B_setup():
        B, S, D, F = 1, 2048, 512, 1792
        return {
            "x": _w((lambda *s: torch.randn(*s, dtype=torch.bfloat16) * 0.05)(B, S, D)),
            "w1": _w((lambda *s: torch.randn(*s, dtype=torch.bfloat16) * 0.2)(S, F) * (S ** -0.5)),
            "b1": _w((lambda *s: torch.randn(*s, dtype=torch.bfloat16) * 3.2)(F) * 0.02),
            "w2": _w((lambda *s: torch.randn(*s, dtype=torch.bfloat16) * 0.05)(F, S) * (F ** -0.5)),
            "b2": _w((lambda *s: torch.randn(*s, dtype=torch.bfloat16) * 0.1)(S) * 0.02),
        }
    _B_in = _B_setup()

    return {
        "A_x": _A_in["x"],
        "A_w_r": _A_in["w_r"],
        "A_w_i": _A_in["w_i"],
        "B_x": _B_in["x"],
        "B_w1": _B_in["w1"],
        "B_b1": _B_in["b1"],
        "B_w2": _B_in["w2"],
        "B_b2": _B_in["b2"],
        "gate_w": _w((lambda *s: torch.randn(*s, dtype=torch.bfloat16) * 0.05)(512) * 16.0),
    }

def reference(A_x, A_w_r, A_w_i, B_x, B_w1, B_b1, B_w2, B_b2, gate_w):
    def _A_ref(x, w_r, w_i):
        B, S, D = x.shape
        X = (lambda x, axes=(-2,-1): torch.fft.rfft2(x.float(), dim=axes))(x, axes=(-2, -1))
        W = w_r + 1j * w_i
        X = X * W
        y = (lambda x, s, axes=(-2,-1): torch.fft.irfft2(x, s=s, dim=axes).to(torch.bfloat16))(X, (S, D), axes=(-2, -1))
        return y

    def _B_ref(x, w1, b1, w2, b2):
        B, S, D = x.shape
        h = _layernorm(x, axis=-1)
        u = torch.einsum("bsd,sf->bdf", h, w1) + b1
        u = _gelu(u)
        y = torch.einsum("bdf,fs->bds", u, w2) + b2
        return (lambda x, *d: x.permute(*d))(y, 0, 2, 1)

    x = A_x
    g = _sigmoid((x * gate_w).sum(-1, keepdims=True))
    a = _A_ref(x, A_w_r, A_w_i)
    b = _B_ref(x, B_w1, B_b1, B_w2, B_b2)
    return g * a + (1 - g) * b
```

```python
import re

REG_RE = re.compile(r'^(-|\|)?(?:abs\()?([vas])(\d+|\[(\d+):(\d+)\])\)?\|?$')

TRANS = ('v_exp_f32', 'v_log_f32', 'v_rcp_f32', 'v_rsq_f32', 'v_sqrt_f32', 'v_sin_f32', 'v_cos_f32',
         'v_rcp_iflag_f32')


def regs_of(tok):
    tok = tok.strip()
    if tok in ('vcc', 'exec', 'm0', 'scc'):
        return [(tok, 0)]
    if tok in ('vcc_lo', 'vcc_hi'):
        return [('vcc', 0)]
    if tok in ('exec_lo', 'exec_hi'):
        return [('exec', 0)]
    m = REG_RE.match(tok)
    if not m:
        return []
    k = m.group(2)
    if m.group(4) is not None:
        return [(k, i) for i in range(int(m.group(4)), int(m.group(5)) + 1)]
    return [(k, int(m.group(3)))]


def split_ops(s):
    out, depth, cur = [], 0, ''
    for ch in s:
        if ch in '[(':
            depth += 1
        if ch in '])':
            depth -= 1
        if ch == ',' and depth == 0:
            out.append(cur.strip()); cur = ''
        else:
            cur += ch
    if cur.strip():
        out.append(cur.strip())
    return out


class Inst:
    __slots__ = ('text', 'op', 'rd', 'wr', 'cls', 'passes', 'srcC', 'srcAB', 'dpp', 'nstates', 'wide_store',
                 'lds_dma', 'tag', 'sdata')

    def __init__(self, text):
        self.text = text
        t = text.split(';')[0].strip()
        parts = t.split(None, 1)
        op = parts[0]
        self.op = op
        rest = parts[1] if len(parts) > 1 else ''
        ops = split_ops(rest)
        mods = ''
        if ops:
            last = ops[-1].split(None, 1)
            if len(last) > 1 and not last[0].endswith(':'):
                ops[-1] = last[0]
                mods = last[1]
        self.rd, self.wr = [], []
        self.passes = 0
        self.srcC, self.srcAB = [], []
        self.dpp = ('_dpp' in op) or ('row_' in mods) or ('quad_perm' in mods)
        self.nstates = 1
        self.wide_store = False
        self.lds_dma = False
        self.tag = None
        self.sdata = []
        R = lambda i: regs_of(ops[i]) if i < len(ops) else []
        allr = lambda a=0: [r for o in ops[a:] for r in regs_of(o)]
        if op == 's_nop':
            self.cls = 'nop'; self.nstates = int(ops[0], 0) + 1
        elif op.startswith('v_mfma'):
            self.cls = 'mfma'
            self.passes = 8 if '32x32' in op else 4
            self.wr = R(0); self.srcAB = R(1) + R(2); self.srcC = R(3)
            self.rd = self.srcAB + self.srcC
        elif op.startswith('v_'):
            self.cls = 'trans' if op.replace('_e32', '').replace('_e64', '') in TRANS else 'valu'
            if op.startswith('v_cmp'):
                self.wr = R(0); self.rd = allr(1)
                if op.startswith('v_cmpx'):
                    self.wr = self.wr + [('exec', 0)]
            elif op.startswith('v_permlane') and 'swap' in op or op.startswith('v_swap'):
                self.wr = R(0) + R(1); self.rd = R(0) + R(1)
            elif op.startswith(('v_add_co', 'v_sub_co', 'v_addc_co', 'v_subb_co', 'v_subrev_co', 'v_mad_u64')):
                self.wr = R(0) + R(1); self.rd = allr(2)
            elif op.startswith(('v_fmac', 'v_dot2c', 'v_pk_fmac', 'v_writelane')):
                self.wr = R(0); self.rd = allr(0)
            elif op == 'v_nop':
                pass
            else:
                self.wr = R(0); self.rd = allr(1)
                if self.dpp:
                    self.rd = self.rd + R(0)
        elif op.startswith('ds_'):
            self.cls = 'ds'
            if op.startswith(('ds_read', 'ds_bpermute', 'ds_permute', 'ds_swizzle')):
                self.wr = R(0); self.rd = allr(1)
            else:
                self.rd = allr(0)
        elif op.startswith(('buffer_', 'global_')):
            self.cls = 'vmem'
            if op in ('buffer_wbl2', 'buffer_inv'):
                pass
            elif 'load' in op:
                if re.search(r'\blds\b', mods) or '_lds_' in op:
                    self.lds_dma = True
                    self.rd = allr(0) + [('m0', 0)]
                else:
                    self.wr = R(0); self.rd = allr(1)
            elif 'atomic' in op:
                self.rd = allr(0)
                if 'sc0' in mods:
                    self.wr = R(0) if op.startswith('buffer') else R(0)
            else:
                self.rd = allr(0)
                self.sdata = R(0) if op.startswith('buffer') else R(1)
                self.wide_store = op.endswith(('x3', 'x4'))
        elif op.startswith(('s_load', 's_buffer_load', 's_memtime', 's_memrealtime', 's_atomic')):
            self.cls = 'smem'
            self.wr = R(0); self.rd = allr(1)
        elif op.startswith('s_'):
            self.cls = 'salu'
            if op.startswith(('s_cmp', 's_bitcmp')):
                self.rd = allr(0); self.wr = [('scc', 0)]
            elif op.startswith(('s_waitcnt', 's_barrier', 's_branch', 's_cbranch', 's_endpgm', 's_setprio',
                                's_sleep', 's_sendmsg')):
                pass
            elif 'saveexec' in op:
                self.wr = R(0) + [('exec', 0), ('scc', 0)]; self.rd = allr(1) + [('exec', 0)]
            else:
                self.wr = R(0); self.rd = allr(1)
                if op.startswith(('s_addk', 's_mulk')):
                    self.rd = self.rd + R(0)
        else:
            raise ValueError('unknown instruction: ' + text)


def need_states(p, c):
    n = 0
    pw = set(p.wr)
    isv = lambda i: i.cls in ('valu', 'trans')
    cr, cw = set(c.rd), set(c.wr)
    vreg = lambda s: {r for r in s if r[0] in 'va' and len(r[0]) == 1}
    sreg = lambda s: {r for r in s if r[0] in ('s', 'vcc')}
    if isv(p):
        pv = vreg(pw)
        if c.cls == 'mfma' and pv & cr:
            n = max(n, 2)
        if isv(c) and c.dpp and pv & cr:
            n = max(n, 2)
        if c.op.startswith('v_permlane') and pv & cr:
            n = max(n, 2)
        if c.op.startswith(('v_readfirstlane', 'v_readlane')) and pv & cr:
            n = max(n, 1)
        if p.cls == 'trans' and pv & cr and c.cls != 'trans':
            n = max(n, 1)
        if p.cls == 'trans' and pv & cr and c.cls == 'trans':
            n = max(n, 1)
        ps = sreg(pw)
        if ps & cr:
            if isv(c):
                n = max(n, 4 if c.op.startswith(('v_readlane', 'v_writelane')) else 2)
            elif c.cls == 'vmem':
                n = max(n, 5)
            else:
                n = max(n, 2)
        if ('exec', 0) in pw:
            if c.cls == 'mfma' or c.op.startswith(('v_readlane', 'v_readfirstlane', 'v_permlane', 'v_writelane')):
                n = max(n, 4)
            if c.dpp:
                n = max(n, 5)
        if 'sdwa' in p.op and 'dst_sel:DWORD' not in p.text and pv & (cr | cw):
            n = max(n, 1)
    if p.cls == 'mfma':
        big = 12 if p.passes == 8 else 8
        pd = set(p.wr)
        if c.cls == 'mfma':
            if pd & set(c.srcAB):
                n = max(n, big)
            if pd & set(c.srcC):
                if not (c.srcC == p.wr and c.passes == p.passes):
                    n = max(n, big - 2)
            if pd & set(c.wr) and not (c.srcC == p.wr and c.passes == p.passes):
                n = max(n, big - 2)
        elif c.cls in ('valu', 'trans', 'ds', 'vmem'):
            if pd & (cr | cw):
                n = max(n, big)
        if isv(c) and set(p.srcC) & cw:
            n = max(n, 7 if p.passes == 8 else 3)
    if p.cls == 'salu' and ('m0', 0) in pw and (c.lds_dma or 'addtid' in c.op):
        n = max(n, 1)
    if p.cls == 'vmem' and p.wide_store and set(p.sdata) & cw:
        n = max(n, 2)
    return n


class Asm:
    def __init__(self):
        self.items = []
        self.vm = []
        self.lg = []
        self.check_waits = True

    def raw(self, s):
        self.items.append(s)

    def label(self, name):
        self.items.append(name + ':')

    def comment(self, s):
        self.items.append('    ; ' + s)

    def __call__(self, text, tag=None):
        for line in text.strip().split('\n'):
            line = line.strip()
            if not line or line.startswith(';'):
                continue
            self._emit(line, tag)

    def _emit(self, line, tag=None):
        i = Inst(line)
        i.tag = tag
        if i.op == 's_waitcnt':
            m = re.search(r'vmcnt\((\d+)\)', line)
            if m:
                n = int(m.group(1))
                assert n <= 63
                if len(self.vm) > n:
                    self.vm = self.vm[len(self.vm) - n:] if n else []
            m = re.search(r'lgkmcnt\((\d+)\)', line)
            if m:
                n = int(m.group(1))
                assert n <= 15
                if n == 0:
                    self.lg = []
                elif not any(x.cls == 'smem' for x in self.lg):
                    if len(self.lg) > n:
                        self.lg = self.lg[len(self.lg) - n:]
        else:
            if self.check_waits:
                touched = set(i.rd) | set(i.wr)
                for q in (self.vm, self.lg):
                    for x in q:
                        if set(x.wr) & touched:
                            raise RuntimeError('missing s_waitcnt: "%s" touches pending result of "%s"' % (line, x.text))
            if i.cls == 'vmem' and i.op not in ('buffer_wbl2x',):
                self.vm.append(i)
            elif i.cls in ('ds', 'smem'):
                self.lg.append(i)
        self.items.append(i)

    def _cnt_after(self, q, pred):
        idx = -1
        for k, x in enumerate(q):
            if pred(x):
                idx = k
        if idx < 0:
            return None
        return len(q) - 1 - idx

    def wait_regs(self, *toks):
        rs = set(r for t in toks for r in regs_of(t))
        nv = self._cnt_after(self.vm, lambda x: set(x.wr) & rs)
        nl = self._cnt_after(self.lg, lambda x: set(x.wr) & rs)
        self._wait(nv, nl)

    def wait_tag(self, *tags):
        nv = self._cnt_after(self.vm, lambda x: x.tag in tags)
        nl = self._cnt_after(self.lg, lambda x: x.tag in tags)
        self._wait(nv, nl)

    def _wait(self, nv, nl):
        parts = []
        if nv is not None:
            parts.append('vmcnt(%d)' % min(nv, 63))
        if nl is not None:
            if any(x.cls == 'smem' for x in self.lg):
                nl = 0
            parts.append('lgkmcnt(%d)' % min(nl, 15))
        if parts:
            self('s_waitcnt ' + ' '.join(parts))

    def save_state(self):
        return (list(self.vm), list(self.lg))

    def restore_state(self, st):
        self.vm, self.lg = list(st[0]), list(st[1])

    def text(self):
        out = []
        hist = []
        MAXD = 13
        for it in self.items:
            if isinstance(it, str):
                out.append(it)
                continue
            need = 0
            dist = 0
            for p in reversed(hist):
                if dist >= MAXD:
                    break
                n = need_states(p, it)
                if n > dist:
                    need = max(need, n - dist)
                dist += p.nstates
            if need > 0:
                nop = Inst('s_nop %d' % (need - 1))
                out.append('    ' + nop.text)
                hist.append(nop)
            out.append('    ' + it.text)
            hist.append(it)
            if len(hist) > 32:
                hist = hist[-32:]
        return '\n'.join(out) + '\n'


def f32hex(x):
    import struct
    return '0x%08x' % struct.unpack('<I', struct.pack('<f', x))[0]


def kernel_desc(name, vgpr, sgpr=102, accum=None, agpr=0):
    if accum is None:
        accum = (vgpr + 3) // 4 * 4
    nfv = accum + agpr if agpr else vgpr
    return f""".p2align 6
.amdhsa_kernel {name}
  .amdhsa_next_free_vgpr {nfv}
  .amdhsa_next_free_sgpr {sgpr}
  .amdhsa_accum_offset {accum}
  .amdhsa_group_segment_fixed_size 0
  .amdhsa_kernarg_size 96
  .amdhsa_user_sgpr_count 2
  .amdhsa_user_sgpr_kernarg_segment_ptr 1
  .amdhsa_system_sgpr_workgroup_id_x 1
.end_amdhsa_kernel
"""
```

```python
import sys, math
sys.path.insert(0, 'dev')
from asmlib import Asm, f32hex

S, D, F = 2048, 512, 1792
WS_H = 0x100000
WS_X1 = 0x400000
WS_WT = 0x700000
WS_G1 = 0xA00000
WS_G2 = 0xA04000
WS_U = 0xB00000
WS_YT = 0xE00000
WS_SIZE = 0x1400000

KA = dict(x=0, wr=8, wi=16, w1=32, b1=40, w2=48, b2=56, gw=64, out=72, dbg=80, ws=88)
LOG2E = 1.4426950408889634


def srd(a, base, ptr, size):
    a(f's_mov_b32 s{base}, s{ptr}')
    a(f's_and_b32 s{base+1}, s{ptr+1}, 0xffff')
    a(f's_mov_b32 s{base+2}, {size}')
    a(f's_mov_b32 s{base+3}, 0x20000')


def vr(b, n=1):
    return f'v{b}' if n == 1 else f'v[{b}:{b+n-1}]'


def ar(b, n=1):
    return f'a{b}' if n == 1 else f'a[{b}:{b+n-1}]'


def fmak(a, dst, mul, k, add):
    if k == 0:
        a(f'v_mov_b32 v{dst}, v{add}')
    elif k in (1.0, 2.0, 4.0, 0.5):
        a(f'v_fma_f32 v{dst}, v{mul}, {k}, v{add}')
    else:
        a(f'v_fmamk_f32 v{dst}, v{mul}, {f32hex(k)}, v{add}')


def gen_k1(a):
    a.label('k1_kernel')
    a('s_load_dwordx2 s[4:5], s[0:1], %d' % KA['x'])
    a('s_load_dwordx2 s[6:7], s[0:1], %d' % KA['ws'])
    a('s_load_dwordx4 s[16:19], s[0:1], %d' % KA['wr'])
    a('s_load_dwordx2 s[20:21], s[0:1], %d' % KA['gw'])
    a('v_lshrrev_b32 v1, 6, v0')
    a('v_and_b32 v2, 63, v0')
    a('v_readfirstlane_b32 s3, v1')
    a('s_cmp_ge_u32 s2, 448')
    a('s_cbranch_scc1 k1_end')
    a('s_waitcnt lgkmcnt(0)')
    srd(a, 8, 4, S * D * 2)
    srd(a, 12, 6, WS_SIZE)
    a('s_cmp_ge_u32 s2, 384')
    a('s_cbranch_scc1 k1_wt')
    a('s_cmp_ge_u32 s2, 256')
    a('s_cbranch_scc1 k1_ln')
    st0 = a.save_state()
    a('s_and_b32 s22, s2, 7')
    a('s_lshr_b32 s23, s2, 3')
    a('s_and_b32 s24, s23, 3')
    a('s_lshr_b32 s25, s23, 2')
    a('s_lshl_b32 s26, s22, 8')
    a('s_lshl_b32 s27, s24, 3')
    a('s_add_u32 s26, s26, s27')
    a('s_add_u32 s26, s26, s3')
    a('s_lshl_b32 s26, s26, 10')
    a('s_lshl_b32 s27, s3, 12')
    a('s_lshl_b32 s28, s3, 6')
    a('v_lshlrev_b32 v3, 4, v2')
    a('v_xor_b32 v3, s28, v3')
    for jj in range(4):
        a(f'v_xor_b32 v{4+jj}, {jj*16}, v3')
        if jj:
            a(f'v_add_u32 v{4+jj}, {jj*(32768-1024)}, v{4+jj}')
    for i in range(4):
        a(f's_add_u32 m0, s27, {i*16384}')
        a(f's_add_u32 s29, s26, {(128*(i%2) + 4*(i//2))*1024}')
        for jj in range(4):
            a(f'buffer_load_dwordx4 v{4+jj}, s[8:11], s29 offen offset:{jj*1024} lds', tag='x')
    vC, vQ, vK, vKF, vBASE, vC2, vSC, vPART = 8, 9, 10, 11, 12, 13, 14, 15
    a(f'v_and_b32 v{vC}, 15, v2')
    a(f'v_lshrrev_b32 v{vQ}, 4, v2')
    a(f'v_and_b32 v{vK}, 7, v2')
    a('s_lshl_b32 s30, s25, 5')
    a('s_lshl_b32 s31, s3, 3')
    a('s_add_u32 s30, s30, s31')
    a(f'v_add_u32 v{vK}, s30, v{vK}')
    a(f'v_lshrrev_b32 v{vPART}, 3, v{vC}')
    a(f'v_cvt_f32_u32 v{vKF}, v{vK}')
    a(f'v_mul_f32 v{vKF}, {f32hex(1/512)}, v{vKF}')
    a(f'v_cvt_f32_u32 v{vBASE}, v{vPART}')
    a(f'v_mul_f32 v{vBASE}, {f32hex(0.25)}, v{vBASE}')
    a(f'v_mov_b32 v{vSC}, 1.0')
    a(f'v_cmp_eq_u32 vcc, 0, v{vK}')
    a(f'v_cndmask_b32 v{vSC}, v{vSC}, 0.5, vcc')
    a(f'v_lshlrev_b32 v16, 1, v{vK}')
    a(f'v_or_b32 v16, v16, v{vPART}')
    a('v_cmp_eq_u32 vcc, 1, v16')
    a(f'v_cndmask_b32 v{vKF}, v{vKF}, 0.5, vcc')
    a(f'v_cndmask_b32 v{vBASE}, v{vBASE}, 0, vcc')
    a(f'v_lshlrev_b32 v16, 3, v{vQ}')
    a('v_cvt_f32_u32 v16, v16')
    a(f'v_fma_f32 v{vBASE}, v{vKF}, v16, v{vBASE}')
    a(f'v_mul_f32 v{vC2}, {f32hex(32.0)}, v{vKF}')
    a(f'v_cos_f32 v{vC2}, v{vC2}')
    a(f'v_add_f32 v{vC2}, v{vC2}, v{vC2}')
    vB = 32
    vT = 96
    for t in range(2):
        for e in range(8):
            fmak(a, vT + 8*t + e, vKF, float(32*t + e), vBASE)
        for e in range(8):
            a(f'v_cos_f32 v{vT+8*t+e}, v{vT+8*t+e}')
        for e in range(8):
            a(f'v_mul_f32 v{vT+8*t+e}, v{vSC}, v{vT+8*t+e}')
        for e in range(0, 8, 2):
            a(f'v_cvt_pk_bf16_f32 v{vB+4*t+e//2}, v{vT+8*t+e}, v{vT+8*t+e+1}')
    for t in range(2, 16):
        cur = vT + 8*((t-1) % 2); new = vT + 8*(t % 2)
        for e in range(8):
            a(f'v_fma_f32 v{new+e}, v{vC2}, v{cur+e}, -v{new+e}')
        for e in range(0, 8, 2):
            a(f'v_cvt_pk_bf16_f32 v{vB+4*t+e//2}, v{new+e}, v{new+e+1}')
    vA = 16
    a(f'v_lshlrev_b32 v20, 10, v{vC}')
    for tau in range(4):
        a(f'v_add_u32 v{vA+tau}, {4*tau}, v{vQ}')
        a(f'v_xor_b32 v{vA+tau}, v{vA+tau}, v{vC}')
        a(f'v_lshl_add_u32 v{vA+tau}, v{vA+tau}, 4, v20')
    vST = 21
    a(f'v_lshlrev_b32 v{vST}, 13, v{vK}')
    a(f'v_lshl_add_u32 v{vST}, v{vPART}, 12, v{vST}')
    a(f'v_lshl_add_u32 v{vST}, v{vQ}, 4, v{vST}')
    a('s_lshr_b32 s30, s24, 1')
    a('s_lshl_b32 s30, s30, 11')
    a('s_lshl_b32 s31, s22, 8')
    a('s_add_u32 s30, s30, s31')
    a('s_and_b32 s31, s24, 1')
    a('s_lshl_b32 s31, s31, 7')
    a('s_add_u32 s30, s30, s31')
    a(f's_add_u32 s30, s30, {WS_X1}')
    a('s_waitcnt vmcnt(0)')
    a('s_barrier')
    vF = 112
    vACC = 96
    NB = 4
    def rd(t):
        for mt in range(4):
            a(f'ds_read_b128 {vr(vF + 16*(t % NB) + 4*mt, 4)}, v{vA + t % 4} offset:{mt*16384 + (t//4)*256}', tag=('A', t))
    for t in range(NB - 1):
        rd(t)
    for t in range(16):
        if t + NB - 1 < 16:
            rd(t + NB - 1)
        a.wait_tag(('A', t))
        for mt in range(4):
            c = '0' if t == 0 else vr(vACC + 4*mt, 4)
            a(f'v_mfma_f32_16x16x32_bf16 {vr(vACC+4*mt,4)}, {vr(vF + 16*(t % NB) + 4*mt, 4)}, {vr(vB+4*t,4)}, {c}')
    for p in range(2):
        for hh in range(2):
            for r in range(0, 4, 2):
                a(f'v_cvt_pk_bf16_f32 v{24+4*p+2*hh+r//2}, v{vACC+4*(2*p+hh)+r}, v{vACC+4*(2*p+hh)+r+1}')
        a(f'buffer_store_dwordx4 {vr(24+4*p,4)}, v{vST}, s[12:15], s30 offen offset:{64*p}')
    a('s_endpgm')

    a.restore_state(st0)
    a.label('k1_ln')
    srd(a, 24, 20, D * 2)
    a('s_sub_u32 s22, s2, 256')
    a('s_and_b32 s23, s22, 7')
    a('s_lshr_b32 s22, s22, 3')
    a('s_lshl_b32 s23, s23, 8')
    a('s_lshl_b32 s22, s22, 4')
    a('s_add_u32 s22, s22, s23')
    a('s_lshl_b32 s23, s3, 2')
    a('s_add_u32 s22, s22, s23')
    a('v_lshrrev_b32 v3, 4, v2')
    a('v_and_b32 v4, 15, v2')
    a('v_add_u32 v3, s22, v3')
    a('v_lshlrev_b32 v5, 4, v4')
    a('v_lshl_add_u32 v6, v3, 10, v5')
    X, GW = 16, 32
    for i in range(4):
        a(f'buffer_load_dwordx4 {vr(X+4*i,4)}, v6, s[8:11], 0 offen offset:{256*i}')
    for i in range(4):
        a(f'buffer_load_dwordx4 {vr(GW+4*i,4)}, v5, s[24:27], 0 offen offset:{256*i}')
    a('v_lshrrev_b32 v7, 3, v4')
    a('v_lshlrev_b32 v7, 18, v7')
    a('v_lshl_add_u32 v7, v3, 7, v7')
    a('v_and_b32 v8, 7, v4')
    a('v_lshl_add_u32 v7, v8, 4, v7')
    a('v_lshlrev_b32 v8, 2, v3')
    a('v_mov_b32 v9, 0x3f803f80')
    a('v_mov_b32 v10, 0')
    a('v_mov_b32 v11, 0')
    a('v_mov_b32 v12, 0')
    a.wait_regs(vr(X, 16))
    for i in range(16):
        a(f'v_dot2_f32_bf16 v10, v{X+i}, v9, v10')
        a(f'v_dot2_f32_bf16 v11, v{X+i}, v{X+i}, v11')
    a.wait_regs(vr(GW, 16))
    for i in range(16):
        a(f'v_dot2_f32_bf16 v12, v{X+i}, v{GW+i}, v12')
    a('s_nop 2')
    for sh in (1, 2, 4, 8):
        for r in (10, 11, 12):
            a(f'v_add_f32_dpp v{r}, v{r}, v{r} row_ror:{sh} row_mask:0xf bank_mask:0xf')
    a(f'v_mul_f32 v10, {f32hex(1/512)}, v10')
    a(f'v_mul_f32 v11, {f32hex(1/512)}, v11')
    a('v_fma_f32 v11, -v10, v10, v11')
    a('v_max_f32 v11, 0, v11')
    a(f'v_add_f32 v11, {f32hex(1e-5)}, v11')
    a('v_rsq_f32 v11, v11')
    a(f'v_mul_f32 v12, {f32hex(-LOG2E)}, v12')
    a('v_exp_f32 v12, v12')
    a('v_mul_f32 v10, v10, v11')
    a('v_sub_f32 v10, 0, v10')
    a('v_add_f32 v12, 1.0, v12')
    a('v_rcp_f32 v12, v12')
    for i in range(16):
        a(f'v_lshlrev_b32 v{GW+i}, 16, v{X+i}')
        a(f'v_and_b32 v{X+i}, 0xffff0000, v{X+i}')
        a(f'v_fma_f32 v{GW+i}, v{GW+i}, v11, v10')
        a(f'v_fma_f32 v{X+i}, v{X+i}, v11, v10')
        a(f'v_cvt_pk_bf16_f32 v{X+i}, v{GW+i}, v{X+i}')
        if i % 4 == 3:
            a(f's_mov_b32 s28, {WS_H + (i//4)*524288}')
            a(f'buffer_store_dwordx4 {vr(X+i-3,4)}, v7, s[12:15], s28 offen')
    a('v_sub_f32 v13, 1.0, v12')
    a(f'v_mul_f32 v12, {f32hex(2.0**-19)}, v12')
    a('v_cmp_eq_u32 vcc, 0, v4')
    a('s_and_saveexec_b64 s[30:31], vcc')
    a(f's_mov_b32 s28, {WS_G1}')
    a(f's_mov_b32 s29, {WS_G2}')
    a('buffer_store_dword v12, v8, s[12:15], s28 offen')
    a('buffer_store_dword v13, v8, s[12:15], s29 offen')
    a('s_endpgm')

    a.restore_state(st0)
    a.label('k1_wt')
    srd(a, 24, 16, S * 257 * 2)
    srd(a, 28, 18, S * 257 * 2)
    a('s_sub_u32 s22, s2, 384')
    a('s_and_b32 s23, s22, 1')
    a('s_lshr_b32 s32, s22, 1')
    a('s_and_b32 s33, s32, 7')
    a('s_lshr_b32 s34, s32, 3')
    a('s_lshl_b32 s35, s34, 4')
    a('s_lshl_b32 s36, s23, 3')
    a('s_add_u32 s35, s35, s36')
    a('s_lshl_b32 s36, s33, 8')
    a('s_add_u32 s35, s35, s36')
    a('s_mul_i32 s36, s35, 514')
    for r in range(1, 4):
        a(f's_add_u32 s{36+r}, s36, {r*64*514}')
    a('s_lshl_b32 s40, s34, 11')
    a('s_lshl_b32 s41, s33, 8')
    a('s_add_u32 s40, s40, s41')
    a('s_lshl_b32 s41, s23, 7')
    a('s_add_u32 s40, s40, s41')
    a(f's_add_u32 s40, s40, {WS_WT}')
    a('v_lshlrev_b32 v3, 1, v0')
    a('v_lshlrev_b32 v4, 13, v0')
    a('v_and_b32 v5, 31, v0')
    a('v_lshrrev_b32 v6, 2, v5')
    a('v_and_b32 v7, 3, v5')
    a('v_lshl_add_u32 v6, v7, 6, v6')
    a('v_mul_u32_u24 v6, 514, v6')
    a('v_add_u32 v6, 512, v6')
    a('v_lshlrev_b32 v5, 2, v5')
    a(f'v_add_u32 v5, {256*8192}, v5')
    a('buffer_load_ushort v8, v6, s[24:27], s36 offen')
    a('buffer_load_ushort v9, v6, s[28:31], s36 offen')
    R_, I_ = 16, 48

    def fin(cc):
        a.wait_regs(vr(R_ + 4*cc, 4), vr(I_ + 4*cc, 4))
        for r in range(4):
            a(f'v_lshl_or_b32 v{R_+4*cc+r}, v{I_+4*cc+r}, 16, v{R_+4*cc+r}')
        a(f'buffer_store_dwordx4 {vr(R_+4*cc,4)}, v4, s[12:15], s40 offen offset:{16*cc}')
    for cc in range(8):
        for r in range(4):
            a(f'buffer_load_ushort v{R_+4*cc+r}, v3, s[24:27], s{36+r} offen offset:{cc*514}')
            a(f'buffer_load_ushort v{I_+4*cc+r}, v3, s[28:31], s{36+r} offen offset:{cc*514}')
        if cc == 6:
            a.wait_regs('v8', 'v9')
            a('v_lshl_or_b32 v8, v9, 16, v8')
            a('buffer_store_dword v8, v5, s[12:15], s40 offen')
            fin(0)
    for cc in range(1, 8):
        fin(cc)
    a.label('k1_end')
    a('s_endpgm')
    return dict(name='k1_kernel', grid=448, block=256, lds=65536, vgpr=176, agpr=0)


def tr_addr(a, v0_, v1_, vlane, sbase, tmp):
    t1, t2 = tmp, tmp + 1
    a(f'v_bfe_u32 v{t1}, v{vlane}, 2, 2')
    a(f'v_lshrrev_b32 v{t2}, 5, v{vlane}')
    a(f'v_lshl_add_u32 v{v0_}, v{t2}, 2, v{t1}')
    a(f'v_lshlrev_b32 v{v0_}, 7, v{v0_}')
    a(f'v_lshrrev_b32 v{t1}, 1, v{t1}')
    a(f'v_lshl_add_u32 v{v0_}, v{t1}, 6, v{v0_}')
    a(f'v_bfe_u32 v{t1}, v{vlane}, 4, 1')
    a(f'v_lshl_add_u32 v{v0_}, v{t1}, 5, v{v0_}')
    a(f'v_and_b32 v{t1}, 3, v{vlane}')
    a(f'v_lshl_add_u32 v{v0_}, v{t1}, 3, v{v0_}')
    a(f'v_add_u32 v{v0_}, s{sbase}, v{v0_}')
    if v1_ is not None:
        a(f'v_xor_b32 v{v1_}, 64, v{v0_}')


def dma_lane(a, vrow, vchunk, vlane):
    a(f'v_lshrrev_b32 v{vrow}, 3, v{vlane}')
    a(f'v_bfe_u32 v{vchunk}, v{vlane}, 4, 1')
    a(f'v_lshlrev_b32 v{vchunk}, 2, v{vchunk}')
    a(f'v_xor_b32 v{vchunk}, v{vchunk}, v{vlane}')
    a(f'v_and_b32 v{vchunk}, 7, v{vchunk}')
    a(f'v_lshlrev_b32 v{vchunk}, 4, v{vchunk}')


def reduce4(a, acc, vW, vlane16, swave, sring, vtmp):
    a(f'v_add_u32 v{vW}, s{sring}, v{vlane16}')
    for k in range(1, 4):
        a(f's_xor_b32 s46, s{swave}, {k}')
        a('s_lshl_b32 s46, s46, 15')
        a(f'v_add_u32 v{vtmp+k-1}, s46, v{vlane16}')
    for k in range(1, 4):
        for qd in range(4):
            a(f'ds_write_b128 v{vW}, {vr(acc+16*k+4*qd,4)} offset:{k*4096+qd*1024}')
    a('s_waitcnt lgkmcnt(0)')
    a('s_barrier')
    for k in range(1, 4):
        for qd in range(4):
            a(f'ds_read_b128 {vr(acc+16*k+4*qd,4)}, v{vtmp+k-1} offset:{k*4096+qd*1024}')


K2_RING = 8
K2_UBUF = 131072


def gen_k2(a):
    a.label('k2_kernel')
    a('s_load_dwordx4 s[4:7], s[0:1], %d' % KA['w1'])
    a('s_load_dwordx2 s[16:17], s[0:1], %d' % KA['ws'])
    a('v_lshrrev_b32 v1, 6, v0')
    a('v_and_b32 v2, 63, v0')
    a('v_readfirstlane_b32 s3, v1')
    a('s_cmp_ge_u32 s2, 256')
    a('s_cbranch_scc1 k2_end')
    a('s_and_b32 s22, s2, 7')
    a('s_lshr_b32 s23, s2, 3')
    a('s_and_b32 s24, s22, 1')
    a('s_lshl_b32 s24, s24, 2')
    a('s_and_b32 s25, s23, 3')
    a('s_add_u32 s24, s24, s25')
    a('s_lshr_b32 s25, s22, 1')
    a('s_mul_i32 s25, s25, 7')
    a('s_lshr_b32 s26, s23, 2')
    a('s_add_u32 s25, s25, s26')
    a('s_add_u32 s27, s2, 1')
    a('s_mov_b32 s28, 0')
    a('s_cmp_lg_u32 s2, 255')
    a('s_cbranch_scc1 k2_p0')
    a('s_mov_b32 s27, 0')
    a('s_mov_b32 s28, 1')
    a.label('k2_p0')
    a('v_and_b32 v3, 15, v2')
    a('v_lshrrev_b32 v4, 4, v2')
    a('v_lshlrev_b32 v5, 4, v2')
    a('s_waitcnt lgkmcnt(0)')
    srd(a, 8, 4, S * F * 2)
    srd(a, 12, 16, WS_SIZE)
    a('s_mov_b32 s32, s6')
    a('s_and_b32 s33, s7, 0xffff')
    a(f's_mov_b32 s34, {F*2}')
    a('s_mov_b32 s35, 0x20000')
    a('s_lshl_b32 s29, s3, 4')
    a('v_add_u32 v6, s29, v3')
    a('v_lshlrev_b32 v7, 7, v6')
    a('v_lshl_add_u32 v7, v4, 5, v7')
    a.label('k2_task')
    vZ, vW, vG = 64, 96, 104
    a('s_lshl_b32 s30, s27, 13')
    a(f's_add_u32 s31, s30, {WS_WT}')
    a(f's_add_u32 s30, s30, {WS_X1}')
    a('s_cmp_lg_u32 s28, 2')
    a('s_cbranch_scc1 k2_p1')
    a('s_add_u32 s30, s30, 4096')
    a(f's_add_u32 s31, s31, {256*8192}')
    a.label('k2_p1')
    a('s_lshl_b32 s36, s3, 11')
    a('s_add_u32 s31, s31, s36')
    a('s_add_u32 s36, s30, 4096')
    a(f's_mov_b32 s37, {WS_G1}')
    for part in range(2):
        for i in range(4):
            a(f'buffer_load_dwordx4 {vr(vZ+16*part+4*i,4)}, v5, s[12:15], s{30 if part == 0 else 36} offen offset:{1024*i}')
    for mt in range(2):
        a(f'buffer_load_dwordx4 {vr(vW+4*mt,4)}, v5, s[12:15], s31 offen offset:{1024*mt}')
    for i in range(2):
        a(f'buffer_load_dwordx4 {vr(vG+4*i,4)}, v7, s[12:15], s37 offen offset:{16*i}')
    vBI = 112
    vA0, vA1, vB0 = 8, 9, 10
    dma_lane(a, 11, 12, 2)
    a('v_mul_u32_u24 v8, 3584, v11')
    a('v_add_u32 v8, v8, v12')
    a('s_lshl_b32 s38, s25, 7')
    a('v_add_u32 v8, s38, v8')
    a(f'v_add_u32 v9, {8*3584-1024}, v8')
    a('v_lshl_add_u32 v10, v11, 7, v12')
    a('s_lshl_b32 s38, s24, 18')
    a(f's_add_u32 s38, s38, {WS_H-2048}')
    a('v_add_u32 v10, s38, v10')
    a(f's_mul_i32 s40, s3, {512*3584}')
    a('s_lshl_b32 s41, s3, 16')
    a('s_lshl_b32 s42, s3, 15')
    a('s_cmp_ge_u32 s2, 224')
    a('s_cbranch_scc1 k2_nogemm')
    def dma(t):
        a(f's_add_u32 m0, s42, {(t % K2_RING)*4096}')
        a(f's_add_u32 s43, s40, {t*16*3584}')
        a(f's_add_u32 s44, s41, {t*16*128}')
        return [f'buffer_load_dwordx4 v{vA0}, s[8:11], s43 offen lds',
                f'buffer_load_dwordx4 v{vA1}, s[8:11], s43 offen offset:1024 lds',
                f'buffer_load_dwordx4 v{vB0}, s[12:15], s44 offen offset:2048 lds',
                f'buffer_load_dwordx4 v{vB0}, s[12:15], s44 offen offset:3072 lds']
    for t in range(K2_RING):
        for x in dma(t):
            a(x, tag=('g', t))
    a('v_lshrrev_b32 v11, 5, v2')
    a('v_lshlrev_b32 v11, 3, v11')
    a('s_lshl_b32 s38, s25, 7')
    a('s_lshr_b32 s39, s3, 1')
    a('s_lshl_b32 s39, s39, 6')
    a('s_add_u32 s38, s38, s39')
    for Q in range(4):
        a(f'buffer_load_dwordx2 {vr(vBI+2*Q,2)}, v11, s[32:35], s38 offen offset:{16*Q}')
    a('s_branch k2_gen')
    st_gemm = a.save_state()
    a.label('k2_nogemm')
    a('s_waitcnt vmcnt(0)')
    a.label('k2_gen')
    a.restore_state(st_gemm)
    C64, S64, N64 = 128, 136, 144
    C32, S32, N32 = 152, 160, 168
    T1C, T1S, T2C, T2S = 176, 184, 192, 200
    TMP = 208
    vKf, vB_, vCf = 13, 14, 15
    a(f'v_cvt_f32_u32 v{vKf}, v6')
    a(f'v_mul_f32 v{vKf}, {f32hex(1/64)}, v{vKf}')
    a('v_lshlrev_b32 v16, 3, v4')
    a('v_cvt_f32_u32 v16, v16')
    a(f'v_mul_f32 v{vB_}, v{vKf}, v16')
    for t in range(2):
        for e in range(8):
            fmak(a, TMP + e, vKf, float(32*t + e), vB_)
        for e in range(8):
            a(f'v_sin_f32 v{TMP+8+e}, v{TMP+e}')
            a(f'v_cos_f32 v{TMP+e}, v{TMP+e}')
        for e in range(0, 8, 2):
            a(f'v_cvt_pk_bf16_f32 v{C64+4*t+e//2}, v{TMP+e}, v{TMP+e+1}')
            a(f'v_cvt_pk_bf16_f32 v{S64+4*t+e//2}, v{TMP+8+e}, v{TMP+8+e+1}')
            a(f'v_xor_b32 v{N64+4*t+e//2}, 0x80008000, v{S64+4*t+e//2}')
    a('v_lshlrev_b32 v17, 2, v4')
    a('v_cvt_f32_u32 v17, v17')
    a(f'v_cvt_f32_u32 v{vCf}, v3')
    for mt in range(2):
        a(f'v_add_f32 v18, {f32hex(16.0*mt)}, v{vCf}')
        a(f'v_mul_f32 v18, {f32hex(1/32)}, v18')
        a('v_mul_f32 v19, v18, v17')
        for e in range(8):
            fmak(a, TMP + e, 18, float(16*(e//4) + e % 4), 19)
        for e in range(8):
            a(f'v_sin_f32 v{TMP+8+e}, v{TMP+e}')
            a(f'v_cos_f32 v{TMP+e}, v{TMP+e}')
        for e in range(0, 8, 2):
            a(f'v_cvt_pk_bf16_f32 v{C32+4*mt+e//2}, v{TMP+e}, v{TMP+e+1}')
            a(f'v_cvt_pk_bf16_f32 v{S32+4*mt+e//2}, v{TMP+8+e}, v{TMP+8+e+1}')
            a(f'v_xor_b32 v{N32+4*mt+e//2}, 0x80008000, v{S32+4*mt+e//2}')
    a(f'v_mul_f32 v18, {f32hex(1/32)}, v{vKf}')
    a('v_mul_f32 v19, v18, v17')
    for mt in range(2):
        for r in range(4):
            fmak(a, T1C + 4*mt + r, 18, float(16*mt + r), 19)
    for i in range(8):
        a(f'v_sin_f32 v{T1S+i}, v{T1C+i}')
        a(f'v_cos_f32 v{T1C+i}, v{T1C+i}')
    a('v_cvt_f32_u32 v20, s29')
    a('v_add_f32 v20, v20, v17')
    for nt in range(2):
        a(f'v_add_f32 v18, {f32hex(16.0*nt)}, v{vCf}')
        a(f'v_mul_f32 v18, {f32hex(1/2048)}, v18')
        a('v_mul_f32 v19, v18, v20')
        for r in range(4):
            fmak(a, T2C + 4*nt + r, 18, float(r), 19)
    for i in range(8):
        a(f'v_sin_f32 v{T2S+i}, v{T2C+i}')
        a(f'v_cos_f32 v{T2C+i}, v{T2C+i}')
    vUW, vUR = 21, 22
    a(f'v_mul_u32_u24 v{vUW}, 144, v3')
    a(f'v_lshl_add_u32 v{vUW}, v4, 3, v{vUW}')
    a('s_lshl_b32 s38, s3, 5')
    a(f's_add_u32 s38, s38, {K2_UBUF}')
    a(f'v_add_u32 v{vUW}, s38, v{vUW}')
    a(f'v_lshrrev_b32 v{vUR}, 2, v3')
    a(f'v_lshlrev_b32 v{vUR}, 3, v{vUR}')
    a('v_and_b32 v18, 3, v3')
    a(f'v_add_u32 v{vUR}, v{vUR}, v18')
    a(f'v_mul_u32_u24 v{vUR}, 144, v{vUR}')
    a(f'v_lshl_add_u32 v{vUR}, v4, 4, v{vUR}')
    a(f'v_add_u32 v{vUR}, {K2_UBUF}, v{vUR}')
    vYO = 23
    a(f'v_lshrrev_b32 v{vYO}, 1, v6')
    a(f'v_lshlrev_b32 v{vYO}, 16, v{vYO}')
    a('v_and_b32 v18, 1, v3')
    a(f'v_lshl_add_u32 v{vYO}, v18, 6, v{vYO}')
    a(f'v_lshl_add_u32 v{vYO}, v4, 4, v{vYO}')
    a('s_lshl_b32 s38, s27, 8')
    a('s_lshr_b32 s39, s28, 1')
    a('s_lshl_b32 s39, s39, 7')
    a('s_add_u32 s38, s38, s39')
    a(f's_add_u32 s38, s38, {WS_YT}')
    AC = 24
    P = 40
    a.wait_regs(vr(vZ, 32))
    a('s_cmp_eq_u32 s28, 0')
    a('s_cbranch_scc1 k2_cplx')
    for i in range(16):
        a(f'v_mov_b32 v{vZ+16+i}, 0')
    a.label('k2_cplx')
    Zr = lambda mt, t: vr(vZ + 8*mt + 4*t, 4)
    Zi = lambda mt, t: vr(vZ + 16 + 8*mt + 4*t, 4)
    accR = lambda i: vr(AC + 4*i, 4)
    accI = lambda i: vr(AC + 8 + 4*i, 4)
    MF = 'v_mfma_f32_16x16x32_bf16'
    a('s_nop 1')
    for t in range(2):
        for mt in range(2):
            a(f'{MF} {accR(mt)}, {Zr(mt,t)}, {vr(C64+4*t,4)}, {"0" if t == 0 else accR(mt)}')
            a(f'{MF} {accI(mt)}, {Zi(mt,t)}, {vr(C64+4*t,4)}, {"0" if t == 0 else accI(mt)}')
        for mt in range(2):
            a(f'{MF} {accR(mt)}, {Zi(mt,t)}, {vr(S64+4*t,4)}, {accR(mt)}')
            a(f'{MF} {accI(mt)}, {Zr(mt,t)}, {vr(N64+4*t,4)}, {accI(mt)}')
    WR, WI = TMP + 16, TMP + 24
    a.wait_regs(vr(vW, 8))
    for i in range(8):
        a(f'v_lshlrev_b32 v{WR+i}, 16, v{vW+i}')
        a(f'v_and_b32 v{WI+i}, 0xffff0000, v{vW+i}')

    def cmul(cr, ci, sign):
        for i in range(8):
            a(f'v_mul_f32 v{TMP+i}, v{AC+i}, v{cr+i}')
            a(f'v_mul_f32 v{TMP+8+i}, v{AC+8+i}, v{cr+i}')
        for i in range(8):
            a(f'v_fma_f32 v{TMP+i}, {"-" if sign > 0 else ""}v{AC+8+i}, v{ci+i}, v{TMP+i}')
            a(f'v_fma_f32 v{TMP+8+i}, {"" if sign > 0 else "-"}v{AC+i}, v{ci+i}, v{TMP+8+i}')

    def pack():
        for i in range(0, 8, 2):
            a(f'v_cvt_pk_bf16_f32 v{P+i//2}, v{TMP+i}, v{TMP+i+1}')
        for i in range(0, 8, 2):
            a(f'v_cvt_pk_bf16_f32 v{P+4+i//2}, v{TMP+8+i}, v{TMP+8+i+1}')
    Pr, Pi = vr(P, 4), vr(P + 4, 4)
    cmul(T1C, T1S, -1)
    pack()
    for mo in range(2):
        a(f'{MF} {accR(mo)}, {vr(C32+4*mo,4)}, {Pr}, 0')
        a(f'{MF} {accI(mo)}, {vr(C32+4*mo,4)}, {Pi}, 0')
    for mo in range(2):
        a(f'{MF} {accR(mo)}, {vr(S32+4*mo,4)}, {Pi}, {accR(mo)}')
        a(f'{MF} {accI(mo)}, {vr(N32+4*mo,4)}, {Pr}, {accI(mo)}')
    cmul(WR, WI, +1)
    pack()
    for nt in range(2):
        a(f'{MF} {accR(nt)}, {Pr}, {vr(C32+4*nt,4)}, 0')
        a(f'{MF} {accI(nt)}, {Pi}, {vr(C32+4*nt,4)}, 0')
    for nt in range(2):
        a(f'{MF} {accR(nt)}, {Pi}, {vr(N32+4*nt,4)}, {accR(nt)}')
        a(f'{MF} {accI(nt)}, {Pr}, {vr(S32+4*nt,4)}, {accI(nt)}')
    cmul(T2C, T2S, +1)
    pack()
    for part in range(2):
        for nt in range(2):
            a(f'ds_write_b64 v{vUW}, {vr(P+4*part+2*nt,2)} offset:{part*4608 + nt*16*144}')
    a('s_waitcnt lgkmcnt(0)')
    a('s_barrier')
    for part in range(2):
        for mt in range(2):
            for t in range(2):
                a(f'ds_read_b128 {vr(vZ+16*part+8*mt+4*t,4)}, v{vUR} offset:{part*4608 + mt*4*144 + t*64}')
    a('s_waitcnt lgkmcnt(0)')
    for t in range(2):
        for mt in range(2):
            a(f'{MF} {accR(mt)}, {Zr(mt,t)}, {vr(C64+4*t,4)}, {"0" if t == 0 else accR(mt)}')
            a(f'{MF} {accI(mt)}, {Zi(mt,t)}, {vr(C64+4*t,4)}, {"0" if t == 0 else accI(mt)}')
        for mt in range(2):
            a(f'{MF} {accR(mt)}, {Zi(mt,t)}, {vr(N64+4*t,4)}, {accR(mt)}')
            a(f'{MF} {accI(mt)}, {Zr(mt,t)}, {vr(S64+4*t,4)}, {accI(mt)}')
    a.wait_regs(vr(vG, 8))
    for i in range(8):
        a(f'v_mul_f32 v{TMP+i}, v{AC+i}, v{vG+i}')
    for i in range(8):
        a(f'v_mul_f32 v{TMP+8+i}, v{AC+8+i}, v{vG+i}')
    pack()
    a(f'buffer_store_dwordx4 {Pr}, v{vYO}, s[12:15], s38 offen')
    a('s_cmp_lg_u32 s28, 0')
    a('s_cbranch_scc1 k2_real')
    a(f'buffer_store_dwordx4 {Pi}, v{vYO}, s[12:15], s38 offen offset:128')
    a('s_cmp_ge_u32 s2, 224')
    a('s_cbranch_scc1 k2_end')
    ACC = 64
    FR = 128
    vT0, vT1 = 24, 25
    a.wait_regs(vr(vBI, 8))
    BI = 48
    for i in range(8):
        a(f'v_lshlrev_b32 v{BI+2*i}, 16, v{vBI+i}')
        a(f'v_and_b32 v{BI+2*i+1}, 0xffff0000, v{vBI+i}')
    tr_addr(a, 28, None, 2, 42, 29)
    a('s_lshr_b32 s45, s3, 1')
    a('s_lshl_b32 s45, s45, 6')
    a(f'v_xor_b32 v{vT0}, s45, v28')
    a(f'v_xor_b32 v{vT0+1}, 64, v{vT0}')
    a('s_and_b32 s45, s3, 1')
    a('s_lshl_b32 s45, s45, 6')
    a(f'v_xor_b32 v{vT0+2}, s45, v28')
    a(f'v_xor_b32 v{vT0+3}, 64, v{vT0+2}')
    NT = 32

    def rdfr(t):
        b = FR + 16*(t % 2)
        so = (t % K2_RING) * 4096
        for opnd in range(2):
            for i in range(2):
                for u in range(2):
                    a(f'ds_read_b64_tr_b16 {vr(b+8*opnd+4*i+2*u,2)}, v{vT0+2*opnd+i} offset:{so + opnd*2048 + u*1024}', tag=('f', t))
    a.wait_tag(('g', 0))
    rdfr(0)
    for t in range(NT):
        if t + 1 < NT:
            a.wait_tag(('g', t + 1))
            rdfr(t + 1)
        a.wait_tag(('f', t))
        dm = dma(t + K2_RING) if t + K2_RING < NT else []
        b = FR + 16*(t % 2)
        for i in range(2):
            for j in range(2):
                c = vr(ACC + 16*(2*i+j), 16)
                a(f'v_mfma_f32_32x32x16_bf16 {c}, {vr(b+4*i,4)}, {vr(b+8+4*j,4)}, {"0" if t == 0 else c}')
                if dm:
                    a(dm[2*i+j], tag=('g', t + K2_RING))
    R = ACC
    reduce4(a, ACC, 28, 5, 3, 42, 29)
    a('s_mul_i32 s46, s24, 229376')
    a('s_lshl_b32 s47, s25, 13')
    a('s_add_u32 s46, s46, s47')
    a('s_lshr_b32 s47, s3, 1')
    a('s_lshl_b32 s47, s47, 12')
    a('s_add_u32 s46, s46, s47')
    a('s_and_b32 s47, s3, 1')
    a('s_lshl_b32 s47, s47, 10')
    a('s_add_u32 s46, s46, s47')
    a(f's_add_u32 s46, s46, {WS_U}')
    for r in range(0, 16, 2):
        a(f'v_pk_add_f32 {vr(R+r,2)}, {vr(R+r,2)}, {vr(BI+r,2)}')
    for k in range(1, 4):
        a.wait_regs(vr(ACC + 16*k, 16))
        for r in range(0, 16, 2):
            a(f'v_pk_add_f32 {vr(R+r,2)}, {vr(R+r,2)}, {vr(ACC+16*k+r,2)}')
    k0 = 2 * math.sqrt(2 / math.pi) * LOG2E
    k1 = k0 * 0.044715
    a(f'v_mov_b32 v28, {f32hex(-k1)}')
    E = 144
    for r in range(16):
        a(f'v_mul_f32 v{E+r}, v{R+r}, v{R+r}')
    for r in range(16):
        a(f'v_fmaak_f32 v{E+r}, v{E+r}, v28, {f32hex(-k0)}')
    for r in range(16):
        a(f'v_mul_f32 v{E+r}, v{E+r}, v{R+r}')
    for r in range(16):
        a(f'v_exp_f32 v{E+r}, v{E+r}')
    for r in range(16):
        a(f'v_add_f32 v{E+r}, 1.0, v{E+r}')
    for r in range(16):
        a(f'v_rcp_f32 v{E+r}, v{E+r}')
    for r in range(16):
        a(f'v_mul_f32 v{R+r}, v{R+r}, v{E+r}')
    for r in range(0, 16, 2):
        a(f'v_cvt_pk_bf16_f32 v{E+r//2}, v{R+r}, v{R+r+1}')
    a(f'buffer_store_dwordx4 {vr(E,4)}, v5, s[12:15], s46 offen')
    a(f'buffer_store_dwordx4 {vr(E+4,4)}, v5, s[12:15], s46 offen offset:2048')
    a('s_endpgm')
    a.label('k2_real')
    a('s_cmp_eq_u32 s28, 2')
    a('s_cbranch_scc1 k2_end')
    a('s_mov_b32 s28, 2')
    a('s_waitcnt vmcnt(0)')
    a('s_barrier')
    a('s_branch k2_task')
    a.label('k2_end')
    a('s_endpgm')
    return dict(name='k2_kernel', grid=256, block=256, lds=K2_UBUF + 9216, vgpr=240, agpr=0)


K3_RING = 12


def gen_k3(a):
    a.label('k3_kernel')
    a('s_load_dwordx4 s[4:7], s[0:1], %d' % KA['w2'])
    a('s_load_dwordx2 s[16:17], s[0:1], %d' % KA['ws'])
    a('s_load_dwordx2 s[18:19], s[0:1], %d' % KA['out'])
    a('v_lshrrev_b32 v1, 6, v0')
    a('v_and_b32 v2, 63, v0')
    a('v_readfirstlane_b32 s3, v1')
    a('s_cmp_ge_u32 s2, 256')
    a('s_cbranch_scc1 k3_end')
    a('s_and_b32 s22, s2, 7')
    a('s_lshr_b32 s23, s2, 3')
    a('s_lshl_b32 s24, s22, 2')
    a('s_and_b32 s25, s23, 3')
    a('s_add_u32 s24, s24, s25')
    a('s_lshr_b32 s25, s23, 2')
    a('v_lshlrev_b32 v5, 4, v2')
    dma_lane(a, 11, 12, 2)
    a('v_lshl_add_u32 v8, v11, 12, v12')
    a('s_lshl_b32 s26, s24, 7')
    a('v_add_u32 v8, s26, v8')
    a(f'v_add_u32 v9, {8*4096-1024}, v8')
    a('v_lshl_add_u32 v10, v11, 7, v12')
    a(f's_mul_i32 s40, s3, {448*4096}')
    a('s_mul_i32 s41, s25, 229376')
    a(f's_mul_i32 s26, s3, {28*2048}')
    a('s_add_u32 s41, s41, s26')
    a(f's_add_u32 s41, s41, {WS_U}')
    a('s_lshl_b32 s45, s24, 16')
    a('s_lshl_b32 s26, s3, 14')
    a('s_add_u32 s45, s45, s26')
    a(f's_add_u32 s45, s45, {WS_YT}')
    a('s_lshl_b32 s42, s3, 15')
    a('v_and_b32 v3, 31, v2')
    a('v_lshrrev_b32 v4, 5, v2')
    a('s_lshr_b32 s48, s3, 1')
    a('s_and_b32 s49, s3, 1')
    a('s_lshl_b32 s26, s24, 6')
    a('s_lshl_b32 s27, s49, 5')
    a('s_add_u32 s26, s26, s27')
    a('v_add_u32 v6, s26, v3')
    a('v_lshlrev_b32 v7, 1, v6')
    a('v_xor_b32 v13, 64, v7')
    a('v_lshlrev_b32 v28, 2, v6')
    a('v_xor_b32 v29, 128, v28')
    a('s_lshl_b32 s27, s48, 10')
    a('v_xor_b32 v30, s27, v5')
    a('v_xor_b32 v31, 0x400, v30')
    a('s_waitcnt lgkmcnt(0)')
    srd(a, 8, 4, F * S * 2)
    srd(a, 12, 16, WS_SIZE)
    srd(a, 28, 6, S * 2)
    srd(a, 32, 18, S * D * 2)
    vB2, vG2 = 14, 16
    a(f's_mov_b32 s26, {WS_G2}')
    for j in range(2):
        a(f'buffer_load_ushort v{vB2+j}, v{(7, 13)[j]}, s[28:31], 0 offen')
    for j in range(2):
        a(f'buffer_load_dword v{vG2+j}, v{28+j}, s[12:15], s26 offen')
    NW, NT = 28, 36

    def issue(t):
        out = [f's_add_u32 m0, s42, {(t % K3_RING)*2048}']
        if t < NW:
            out += [f's_add_u32 s43, s40, {t*16*4096}', f's_add_u32 s44, s41, {t*2048}']
            ld = [f'buffer_load_dwordx4 v8, s[8:11], s43 offen lds',
                  f'buffer_load_dwordx4 v9, s[8:11], s43 offen offset:1024 lds',
                  f'buffer_load_dwordx4 {ar(8*(t % K3_RING),4)}, v30, s[12:15], s44 offen',
                  f'buffer_load_dwordx4 {ar(8*(t % K3_RING)+4,4)}, v31, s[12:15], s44 offen']
        else:
            out += [f's_add_u32 s43, s45, {(t-NW)*2048}']
            ld = [f'buffer_load_dwordx4 v10, s[12:15], s43 offen lds',
                  f'buffer_load_dwordx4 v10, s[12:15], s43 offen offset:1024 lds']
        for x in out:
            a(x)
        return ld
    for t in range(K3_RING):
        for x in issue(t):
            a(x, tag=('g', t))
    GB = 128
    TMP = 192
    a('s_lshl_b32 s26, s25, 6')
    a('s_lshl_b32 s27, s48, 5')
    a('s_add_u32 s26, s26, s27')
    a('v_add_u32 v18, s26, v3')
    a('v_lshlrev_b32 v19, 1, v4')
    a('s_lshl_b32 s27, s3, 6')
    a('v_add_u32 v19, s27, v19')
    a('v_cvt_f32_u32 v19, v19')
    a('v_and_b32 v26, 1, v3')
    a('v_cvt_f32_u32 v26, v26')
    a('v_fma_f32 v26, v26, -2.0, 1.0')
    a('v_cmp_gt_u32 s[36:37], 32, v0')
    for i in range(2):
        df, b0, b1, c2 = 20, 21, 22, 24 + i
        if i:
            a('v_xor_b32 v18, 32, v18')
        a(f'v_cvt_f32_u32 v{df}, v18')
        a(f'v_mul_f32 v{df}, {f32hex(1/512)}, v{df}')
        a(f'v_mul_f32 v{b0}, v{df}, v19')
        a(f'v_add_f32 v{b1}, {f32hex(0.25)}, v{b0}')
        a(f'v_mul_f32 v{c2}, {f32hex(8.0)}, v{df}')
        a(f'v_cos_f32 v{c2}, v{c2}')
        for tau in range(2):
            tb = TMP + 16*i + 8*tau
            for e in range(8):
                u, rho = e // 4, e % 4
                fmak(a, tb + e, df, float(8*tau + 4*u + rho//2), b1 if rho % 2 else b0)
            for e in range(8):
                a(f'v_cos_f32 v{tb+e}, v{tb+e}')
            if tau == 0:
                a(f'v_cndmask_b32 v27, v{tb+1}, v26, s[36:37]')
            for e in range(0, 8, 2):
                src1 = 27 if (tau == 0 and e == 0) else tb + e + 1
                a(f'v_cvt_pk_bf16_f32 v{GB+8*tau+4*i+e//2}, v{tb+e}, v{src1}')
        a(f'v_add_f32 v{c2}, v{c2}, v{c2}')
    for tau in range(2, 8):
        for i in range(2):
            cur = TMP + 16*i + 8*((tau-1) % 2); new = TMP + 16*i + 8*(tau % 2)
            for e in range(8):
                a(f'v_fma_f32 v{new+e}, v{24+i}, v{cur+e}, -v{new+e}')
            for e in range(0, 8, 2):
                a(f'v_cvt_pk_bf16_f32 v{GB+8*tau+4*i+e//2}, v{new+e}, v{new+e+1}')
    vT0 = 20
    tr_addr(a, vT0, None, 2, 42, 22)
    a('s_lshl_b32 s26, s49, 6')
    a(f'v_xor_b32 v{vT0}, s26, v{vT0}')
    a(f'v_xor_b32 v{vT0+1}, 64, v{vT0}')
    ACC = 64
    FR = 32
    a.wait_regs(vr(vB2, 2))
    for j in range(2):
        a(f'v_lshlrev_b32 v{vB2+j}, 16, v{vB2+j}')
        a(f'v_mul_f32 v{vB2+j}, {f32hex(0.25)}, v{vB2+j}')
    for i in range(2):
        for j in range(2):
            for r in range(16):
                a(f'v_mov_b32 v{ACC+16*(2*i+j)+r}, v{vB2+j}')

    def rdfr(t):
        b = FR + 8*(t % 2)
        so = (t % K3_RING) * 2048
        for j in range(2):
            for u in range(2):
                a(f'ds_read_b64_tr_b16 {vr(b+4*j+2*u,2)}, v{vT0+j} offset:{so + u*1024}', tag=('f', t))
    a.wait_tag(('g', 0))
    rdfr(0)
    for t in range(NT):
        if t + 1 < NT:
            a.wait_tag(('g', t + 1))
            rdfr(t + 1)
        a.wait_tag(('f', t))
        if t == NW:
            a.wait_regs(vr(vG2, 2))
            for i in range(2):
                for j in range(2):
                    for r in range(16):
                        x = ACC + 16*(2*i+j) + r
                        a(f'v_mul_f32 v{x}, v{vG2+j}, v{x}')
        b = FR + 8*(t % 2)
        mf = []
        for i in range(2):
            for j in range(2):
                c = vr(ACC + 16*(2*i+j), 16)
                A = ar(8*(t % K3_RING) + 4*i, 4) if t < NW else vr(GB + 8*(t-NW) + 4*i, 4)
                mf.append(f'v_mfma_f32_32x32x16_bf16 {c}, {A}, {vr(b+4*j,4)}, {c}')
        nx = t + K3_RING
        if nx < NT:
            ld = issue(nx)
            a(mf[0]); a(ld[0], tag=('g', nx))
            a(mf[1]); a(ld[1], tag=('g', nx))
            a(mf[2]); a(mf[3])
            for x in ld[2:]:
                a(x, tag=('g', nx))
        else:
            for x in mf:
                a(x)
    R = ACC
    reduce4(a, ACC, 26, 5, 3, 42, 27)
    a('v_lshlrev_b32 v6, 10, v6')
    a('v_lshl_add_u32 v6, v4, 4, v6')
    a('s_lshl_b32 s46, s25, 7')
    a('s_lshl_b32 s47, s48, 6')
    a('s_add_u32 s46, s46, s47')
    for k in range(1, 4):
        a.wait_regs(vr(ACC + 16*k, 16))
        for r in range(0, 16, 2):
            a(f'v_pk_add_f32 {vr(R+r,2)}, {vr(R+r,2)}, {vr(ACC+16*k+r,2)}')
    E = 144
    for r in range(0, 16, 2):
        a(f'v_cvt_pk_bf16_f32 v{E+r//2}, v{R+r}, v{R+r+1}')
    for hq in range(2):
        a(f'v_permlane32_swap_b32 v{E+4*hq}, v{E+4*hq+2}')
        a(f'v_permlane32_swap_b32 v{E+4*hq+1}, v{E+4*hq+3}')
        a(f'buffer_store_dwordx4 {vr(E+4*hq,4)}, v6, s[32:35], s46 offen offset:{32*hq}')
    a.label('k3_end')
    a('s_endpgm')
    return dict(name='k3_kernel', grid=256, block=256, lds=131072, vgpr=224, agpr=8*K3_RING)


HEADER = open('gated_mix__spectral_gfnet__mixer_token_mlp__prompt.s.ref').read().split('; Override launch')[0]


def desc(k):
    accum = (k['vgpr'] + 3) // 4 * 4
    nfv = accum + k['agpr'] if k['agpr'] else k['vgpr']
    return f""".p2align 6
.amdhsa_kernel {k['name']}
  .amdhsa_next_free_vgpr {nfv}
  .amdhsa_next_free_sgpr 96
  .amdhsa_accum_offset {accum}
  .amdhsa_group_segment_fixed_size 0
  .amdhsa_kernarg_size 96
  .amdhsa_user_sgpr_count 2
  .amdhsa_user_sgpr_kernarg_segment_ptr 1
  .amdhsa_system_sgpr_workgroup_id_x 1
  .amdhsa_float_denorm_mode_32 3
.end_amdhsa_kernel
"""


def build(gens):
    body = ''
    ks = []
    for g in gens:
        a = Asm()
        k = g(a)
        ks.append(k)
        body += f".globl {k['name']}\n.p2align 8\n.type {k['name']},@function\n" + a.text()
    out = HEADER
    for k in ks:
        out += f"; @launch kernel={k['name']} grid=({k['grid']},1,1) block=({k['block']},1,1) lds={k['lds']}\n"
    out += '.amdgcn_target "amdgcn-amd-amdhsa--gfx950"\n.text\n' + body
    out += '.section .rodata,"a"\n'
    for k in ks:
        out += desc(k)
    return out


if __name__ == '__main__':
    dst = sys.argv[1] if len(sys.argv) > 1 else 'gated_mix__spectral_gfnet__mixer_token_mlp__prompt.s'
    open(dst, 'w').write(build([gen_k1, gen_k2, gen_k3]))
    print('wrote', dst)
```
